```python
import torch

def _softmax(x, axis=-1):
    return torch.softmax(x, dim=axis)
def _gelu(x):
    return torch.nn.functional.gelu(x, approximate="tanh")
def _silu(x):
    return torch.nn.functional.silu(x)
def _sigmoid(x):
    return torch.sigmoid(x)
def _layernorm(x, axis=-1, eps=1e-5):
    m = x.mean(dim=axis, keepdim=True)
    v = x.var(dim=axis, keepdim=True, unbiased=False)
    return (x - m) / torch.sqrt(v + eps)
def _scatter_add(tgt, idx, src, axis=0):
    return tgt.clone().index_add_(axis, idx, src)
def _segment_sum(src, seg, n):
    out = torch.zeros((n,) + src.shape[1:], dtype=src.dtype)
    return out.index_add_(0, seg, src)
def _pad(x, pw):
    flat = tuple(v for pair in reversed(pw) for v in pair)
    return torch.nn.functional.pad(x, flat)

kernel_name = 'parallel_sum__mha_block_cached__dense_activation_gelu__decode'

def setup_inputs():

    _w = (lambda a: (lambda t: t.to(torch.bfloat16) if t.is_floating_point() else t)(torch.as_tensor(a)))
    def _A_setup():
        B, Sq, D = 1, 1, 576
        H, Sk, Dh = 32, 32768, 128
        return {
            "x": _w((lambda *s: torch.randn(*s, dtype=torch.bfloat16) * 0.05)(B, Sq, D)),
            "k_cache": _w((lambda *s: torch.randn(*s, dtype=torch.bfloat16) * 3.2)(B, H, Sk, Dh)),
            "v_cache": _w((lambda *s: torch.randn(*s, dtype=torch.bfloat16) * 0.8)(B, H, Sk, Dh)),
            "wq": _w((lambda *s: torch.randn(*s, dtype=torch.bfloat16) * 3.2)(D, H * Dh) * (D ** -0.5)),
            "wo": _w((lambda *s: torch.randn(*s, dtype=torch.bfloat16) * 0.8)(H * Dh, D) * ((H * Dh) ** -0.5)),
        }
    _A_in = _A_setup()

    def _B_setup():
        B, S, D, F = 1, 1, 576, 4608
        return {
            "x": _w((lambda *s: torch.randn(*s, dtype=torch.bfloat16) * 0.05)(B, S, D)),
            "w1": _w((lambda *s: torch.randn(*s, dtype=torch.bfloat16) * 3.2)(D, F) * (D ** -0.5)),
            "b1": _w((lambda *s: torch.randn(*s, dtype=torch.bfloat16) * 3.2)(F) * 0.01),
            "w2": _w((lambda *s: torch.randn(*s, dtype=torch.bfloat16) * 0.4)(F, D) * (F ** -0.5)),
            "b2": _w((lambda *s: torch.randn(*s, dtype=torch.bfloat16) * 0.4)(D) * 0.01),
        }
    _B_in = _B_setup()

    return {
        "A_x": _A_in["x"],
        "A_k_cache": _A_in["k_cache"],
        "A_v_cache": _A_in["v_cache"],
        "A_wq": _A_in["wq"],
        "A_wo": _A_in["wo"],
        "B_x": _B_in["x"],
        "B_w1": _B_in["w1"],
        "B_b1": _B_in["b1"],
        "B_w2": _B_in["w2"],
        "B_b2": _B_in["b2"],
    }

def reference(A_x, A_k_cache, A_v_cache, A_wq, A_wo, B_x, B_w1, B_b1, B_w2, B_b2):
    def _A_ref(x, k_cache, v_cache, wq, wo):
        B, Sq, D = x.shape
        H, Dh = 32, 128
        q = (lambda x, *d: x.permute(*d))((x @ wq).reshape(B, Sq, H, Dh), 0, 2, 1, 3)
        scores = torch.einsum("bhqd,bhkd->bhqk", q, k_cache) * (Dh ** -0.5)
        p = _softmax(scores, axis=-1)
        o = torch.einsum("bhqk,bhkd->bhqd", p, v_cache)
        return (lambda x, *d: x.permute(*d))(o, 0, 2, 1, 3).reshape(B, Sq, H * Dh) @ wo

    def _B_ref(x, w1, b1, w2, b2):
        h = torch.einsum("bsd,df->bsf", x, w1) + b1
        h = _gelu(h)
        return torch.einsum("bsf,fd->bsd", h, w2) + b2

    x = A_x
    xn = _layernorm(x, axis=-1)
    return x + _A_ref(xn, A_k_cache, A_v_cache, A_wq, A_wo) + _B_ref(xn, B_w1, B_b1, B_w2, B_b2)
```

```python
import re

TRANS = ("v_exp_f32", "v_log_f32", "v_rcp_f32", "v_rsq_f32", "v_sqrt_f32", "v_sin_f32", "v_cos_f32")


def _regs(tok):
    tok = tok.strip()
    tok = tok.lstrip("-")
    if tok.startswith("abs(") or tok.startswith("|"):
        tok = tok.strip("|").replace("abs(", "").rstrip(")")
    m = re.fullmatch(r"([vsa])(\d+)", tok)
    if m:
        return {(m.group(1), int(m.group(2)))}
    m = re.fullmatch(r"([vsa])\[(\d+):(\d+)\]", tok)
    if m:
        return {(m.group(1), i) for i in range(int(m.group(2)), int(m.group(3)) + 1)}
    if tok in ("vcc", "exec", "m0"):
        return {(tok, 0)}
    return set()


class Ins:
    def __init__(self, text):
        self.text = text
        t = text.split(";")[0].strip()
        self.label = None
        self.op = None
        self.kind = "other"
        self.w = set()
        self.r = set()
        self.srcc = set()
        self.ab = set()
        self.target = None
        self.states = 0
        if not t:
            return
        if t.endswith(":"):
            self.label = t[:-1]
            return
        if t.startswith("."):
            return
        parts = t.split(None, 1)
        op = parts[0]
        self.op = op
        rest = parts[1] if len(parts) > 1 else ""
        ops = [x.strip() for x in re.split(r",(?![^\[]*\])", rest)] if rest else []
        if ops:
            last = ops[-1].split()
            mods = " ".join(last[1:])
            ops[-1] = last[0] if last else ""
        else:
            mods = ""
        self.mods = mods
        self.states = 1
        R = [_regs(o) for o in ops]
        if op == "s_nop":
            self.states = int(ops[0], 0) + 1
            self.kind = "nop"
        elif op.startswith("s_cbranch") or op == "s_branch":
            self.kind = "branch"
            self.target = ops[0]
            if "vcc" in op:
                self.r |= {("vcc", 0)}
        elif op == "s_endpgm":
            self.kind = "end"
        elif op.startswith("v_mfma"):
            self.kind = "mfma"
            self.w = R[0]
            self.ab = R[1] | R[2]
            self.srcc = R[3]
            self.r = self.ab | self.srcc
        elif op.startswith("v_"):
            self.kind = "valu"
            base = op.replace("_e32", "").replace("_e64", "").replace("_dpp", "").replace("_sdwa", "")
            self.base = base
            self.trans = base in TRANS
            self.dpp = ("row_" in mods) or ("quad_perm" in mods) or op.endswith("_dpp")
            self.permlane = "permlane" in op
            self.readlane = base in ("v_readlane_b32", "v_readfirstlane_b32")
            self.w = set(R[0])
            for x in R[1:]:
                self.r |= x
            if base.startswith("v_fmac") or base.startswith("v_dot2c") or base == "v_writelane_b32":
                self.r |= R[0]
            if self.dpp:
                self.r |= R[0]
                self.dppsrc = R[1]
            if self.permlane:
                self.w |= R[1]
                self.r |= R[0]
            if base in ("v_add_co_u32", "v_sub_co_u32", "v_addc_co_u32"):
                self.w |= R[1]
            if base == "v_cndmask_b32" and len(ops) == 3:
                self.r |= {("vcc", 0)}
        elif op.startswith("buffer_") or op.startswith("global_"):
            self.kind = "vmem"
            lds = re.search(r"\blds\b", mods) is not None
            self.lds = lds
            if lds:
                for x in R:
                    self.r |= x
                self.r |= {("m0", 0)}
            elif "load" in op:
                self.w = R[0]
                for x in R[1:]:
                    self.r |= x
                if "d16" in op:
                    self.r |= R[0]
            else:
                for x in R:
                    self.r |= x
                self.data = R[0]
                self.wide = op.endswith("x3") or op.endswith("x4")
                if "atomic" in op and "sc0" in mods:
                    self.w = R[0]
        elif op.startswith("ds_"):
            self.kind = "ds"
            if "read" in op or "rtn" in op or "permute" in op or "swizzle" in op:
                self.w = R[0]
                for x in R[1:]:
                    self.r |= x
            else:
                for x in R:
                    self.r |= x
        elif op.startswith("s_"):
            self.kind = "salu"
            if op.startswith("s_cmp") or op in ("s_waitcnt", "s_barrier", "s_sleep", "s_setprio"):
                for x in R:
                    self.r |= x
            else:
                if R:
                    self.w = set(R[0])
                for x in R[1:]:
                    self.r |= x
                if "saveexec" in op:
                    self.w |= {("exec", 0)}


def need(p, c):
    n = 0
    vw = {x for x in p.w if x[0] in "va" and x[0] != "vcc"}
    sw = {x for x in p.w if x[0] in ("s", "vcc")}
    if p.kind == "valu":
        if c.kind == "valu":
            if c.dpp and (vw & c.dppsrc):
                n = max(n, 2)
            if c.readlane and (vw & c.r):
                n = max(n, 1)
            if c.permlane and (vw & c.r):
                n = max(n, 2)
            if p.trans and not c.trans and (vw & c.r):
                n = max(n, 1)
            if sw & c.r:
                n = max(n, 4 if c.readlane or c.base == "v_writelane_b32" else 2)
            if "sdwa" in p.op and (vw & (c.r | c.w)):
                n = max(n, 1)
        if c.kind == "mfma" and (vw & c.r):
            n = max(n, 2)
        if c.kind == "vmem" and (sw & c.r):
            n = max(n, 5)
        if c.kind in ("salu", "branch") and (sw & c.r):
            n = max(n, 2)
        if p.trans and c.kind in ("vmem", "ds") and (vw & c.r):
            n = max(n, 1)
    if p.kind == "mfma":
        if c.kind == "mfma":
            if p.w & c.ab:
                n = max(n, 8)
            if (p.w & c.srcc) and p.w != c.srcc:
                n = max(n, 6)
            if (p.w & c.srcc) and p.w == c.srcc and p.op != c.op:
                n = max(n, 6)
            if (p.w & c.w) and not (p.w & c.srcc):
                n = max(n, 8)
        elif c.kind in ("valu", "vmem", "ds"):
            if p.w & (c.r | c.w):
                n = max(n, 8)
            if c.kind == "valu" and (p.srcc & c.w):
                n = max(n, 3)
    if p.kind == "vmem" and getattr(p, "wide", False):
        if c.kind in ("valu", "mfma") and (p.data & c.w):
            n = max(n, 2)
        elif p.data & c.w:
            n = max(n, 1)
    if p.kind == "salu" and (("m0", 0) in p.w) and c.kind == "vmem" and c.lds:
        n = max(n, 1)
    return n


MAXD = 9


def fix_hazards(lines):
    ins = [Ins(t) for t in lines]
    changed = True
    total = 0
    start = 0
    while changed:
        changed = False
        labels = {x.label: i for i, x in enumerate(ins) if x.label}
        jumps = {}
        for i, x in enumerate(ins):
            if x.kind == "branch":
                jumps.setdefault(labels[x.target], []).append(i)

        def preds(i):
            out = []
            if i > 0:
                y = ins[i - 1]
                if not (y.op == "s_branch" or y.kind == "end"):
                    out.append(i - 1)
            if ins[i].label:
                out += jumps.get(i, [])
            return out

        for i in range(start, len(ins)):
            c = ins[i]
            if c.op is None or c.kind == "nop":
                continue
            worst = 0
            stack = [(j, 0) for j in preds(i)]
            seen = {}
            while stack:
                j, d = stack.pop()
                if d >= MAXD or seen.get(j, 99) <= d:
                    continue
                seen[j] = d
                p = ins[j]
                if p.op is not None and p.kind != "nop":
                    k = need(p, c) - d
                    if k > worst:
                        worst = k
                nd = d + p.states
                for q in preds(j):
                    stack.append((q, nd))
            if worst > 0:
                ins.insert(i, Ins(f"s_nop {worst - 1}"))
                total += 1
                changed = True
                start = i + 2
                break
    return [x.text for x in ins], total


class Asm:
    def __init__(self):
        self.lines = []

    def __call__(self, s):
        for ln in s.strip("\n").split("\n"):
            ln = ln.strip()
            if ln:
                self.lines.append(ln)

    def c(self, s):
        self.lines.append("; " + s)

    def text(self):
        out, n = fix_hazards(self.lines)
        res = []
        for t in out:
            if t.endswith(":") or t.startswith(".") or t.startswith(";"):
                res.append(t)
            else:
                res.append("    " + t)
        return "\n".join(res) + "\n", n
```

```python
import sys
from asmlib import Asm

NAME = "parallel_sum__mha_block_cached__dense_activation_gelu__decode"
HEADER = open("cdna_kernels/" + NAME + ".s.ref").read().split("; Override launch")[0]

LOG2E = 0x3FB8AA3B
NLOG2E = 0xBFB8AA3B
SCALE = 0x3DB504F3
INV576 = 0x3AE38E39
EPS = 0x3727C5AC
NFLTMAX = 0xFF7FFFFF
OOB = 0x7FFFFF00

WS_G, WS_P, WS_ML, WS_Y = 0x0000, 0x4000, 0x14000, 0x18000
WS_SIZE = 0x3C000
WS_STAMP = 0x20000000
L_QP, L_QB, L_PART, L_WO, L_W2 = 0, 2048, 3072, 6144, 6144 + 18432 + 64
PART_STRIDE = 576
LDS_BYTES = L_W2 + 21504 + 64

S_WG, S_WAVE = 2, 3
S_X, S_K, S_V, S_WQ, S_WO, S_W1, S_B1, S_W2, S_B2, S_OUT, S_DBG, S_WS = 36, 38, 40, 42, 44, 48, 50, 52, 54, 56, 58, 60
S_H, S_J, S_BP = 20, 21, 22
S_LOG2E, S_NLOG2E, S_SCALE = 24, 25, 26
SPIN_LIMIT = 1 << 22


class P:
    nt = 4
    pre = 1
    pol_kv = "nt"
    pol_wq = ""
    pol_w = "nt"
    vlay = "c"
    stamps = 0
    xmap = 1


def srd(a, d, base, size):
    a(f"s_mov_b32 s{d}, s{base}\ns_mov_b32 s{d+1}, s{base+1}\ns_mov_b32 s{d+2}, {size:#x}\ns_mov_b32 s{d+3}, 0x20000")


def allreduce(a, op, v, t):
    for r in (8, 4, 2, 1):
        a(f"{op}_dpp v{v}, v{v}, v{v} row_ror:{r} row_mask:0xf bank_mask:0xf")
    rows(a, op, v, t)


def rows(a, op, v, t, both=True):
    a(f"v_mov_b32 v{t}, v{v}\nv_permlane16_swap_b32 v{t}, v{v}\n{op} v{v}, v{t}, v{v}")
    if both:
        a(f"v_mov_b32 v{t}, v{v}\nv_permlane32_swap_b32 v{t}, v{v}\n{op} v{v}, v{t}, v{v}")


def bf16r(a, v):
    a(f"v_cvt_pk_bf16_f32 v{v}, v{v}, v{v}\nv_and_b32 v{v}, 0xffff0000, v{v}")


def masks(a, base, vn, t):
    a(f"v_and_b32 v{t}, 1, v{vn}\nv_cmp_eq_u32 vcc, 0, v{t}\nv_mov_b32 v{t+1}, 0xffff0000\nv_mov_b32 v{t+2}, 0xffff")
    a(f"v_cndmask_b32 v{t}, v{t+1}, v{t+2}, vcc\nv_lshrrev_b32 v{t+1}, 1, v{vn}")
    for r in range(4):
        a(f"v_cmp_eq_u32 vcc, {r}, v{t+1}\nv_cndmask_b32 v{base+r}, 0, v{t}, vcc")


def spin_tail(a, label, scnt, sleep):
    a(f"s_cbranch_vccz {label}_ok\ns_sub_u32 s{scnt}, s{scnt}, 1\ns_cmp_eq_u32 s{scnt}, 0\ns_cbranch_scc1 {label}_ok")
    if sleep:
        a(f"s_sleep {sleep}")
    a(f"s_branch {label}\n{label}_ok:")


def poll_init(a, label, vt, sr):
    srd(a, sr, S_DBG, 256)
    a(f"s_mov_b32 s30, {SPIN_LIMIT}\nv_mov_b32 v{vt}, 0\n{label}:")
    a(f"buffer_load_dword v{vt+1}, v{vt}, s[{sr}:{sr+3}], 0 offen sc1\ns_waitcnt vmcnt(0)")
    a(f"v_cmp_gt_u32 vcc, 0x100, v{vt+1}")
    spin_tail(a, label, 30, 8)


def stamp(a, p, idx):
    if p.stamps:
        a(f"s_memrealtime s[{64+2*idx}:{65+2*idx}]")


def dma_slice(a, sr, soff, nins, lds_base, vl, vt, pol):
    for i in range(nins):
        a(f"v_add_u32 v{vt}, {64*i}, v{vl}\nv_mul_u32_u24 v{vt+1}, 7282, v{vt}\nv_lshrrev_b32 v{vt+1}, 16, v{vt+1}")
        a(f"v_mul_u32_u24 v{vt+1}, 1008, v{vt+1}\nv_lshl_add_u32 v{vt+1}, v{vt}, 4, v{vt+1}")
        a(f"s_mov_b32 m0, {lds_base + 1024*i}")
        a(f"buffer_load_dwordx4 v{vt+1}, s[{sr}:{sr+3}], s{soff} offen {pol} lds")


def y_addr(a, vd, vn, vg, t):
    a(f"s_mul_i32 s31, s{S_J}, {9*2048}\ns_lshl_b32 s32, s{S_H}, 5\ns_add_u32 s31, s31, s32\ns_add_u32 s31, s31, {WS_Y}")
    a(f"v_lshrrev_b32 v{t}, 3, v{vn}\nv_lshl_add_u32 v{t}, v{vg}, 1, v{t}\nv_lshlrev_b32 v{t}, 11, v{t}")
    a(f"v_and_b32 v{vd}, 7, v{vn}\nv_lshl_add_u32 v{vd}, v{vd}, 2, v{t}\nv_add_u32 v{vd}, s31, v{vd}")
    a(f"v_lshlrev_b32 v{vd+1}, 2, v1\nv_add_u32 v{vd+1}, s31, v{vd+1}\nv_add_u32 v{vd+1}, {8*2048}, v{vd+1}")
    a(f"v_mov_b32 v{t}, {OOB:#x}\nv_cmp_gt_u32 vcc, 8, v1\nv_cndmask_b32 v{vd+1}, v{t}, v{vd+1}, vcc")


def gen(p):
    a = Asm()
    K = NAME + "_kernel"
    a(f'.amdgcn_target "amdgcn-amd-amdhsa--gfx950"\n.text\n.globl {K}\n.p2align 8\n.type {K},@function\n{K}:')
    a("s_cmp_ge_u32 s2, 256\ns_cbranch_scc1 L_end")
    stamp(a, p, 0)
    a("s_load_dwordx16 s[36:51], s[0:1], 0\ns_load_dwordx8 s[52:59], s[0:1], 64\ns_load_dwordx2 s[60:61], s[0:1], 96")
    a("v_lshrrev_b32 v4, 6, v0\nv_and_b32 v1, 63, v0\nv_readfirstlane_b32 s3, v4")
    a("v_and_b32 v2, 15, v1\nv_lshrrev_b32 v3, 4, v1")
    a.c("head group h = 4*(wg & 7) + (wg >> 6), member j = (wg >> 3) & 7, FFN block = 32*(wg & 7) + (wg >> 3)")
    a("s_and_b32 s28, s2, 7\ns_lshr_b32 s29, s2, 3")
    if p.xmap:
        a(f"s_lshl_b32 s{S_H}, s28, 2\ns_lshr_b32 s30, s29, 3\ns_add_u32 s{S_H}, s{S_H}, s30\ns_and_b32 s{S_J}, s29, 7")
        a(f"s_lshl_b32 s{S_BP}, s28, 5\ns_add_u32 s{S_BP}, s{S_BP}, s29")
    else:
        a(f"s_mov_b32 s{S_H}, s29\ns_mov_b32 s{S_J}, s28\ns_mov_b32 s{S_BP}, s2")
    a(f"s_mov_b32 s{S_LOG2E}, {LOG2E:#x}\ns_mov_b32 s{S_NLOG2E}, {NLOG2E:#x}\ns_mov_b32 s{S_SCALE}, {SCALE:#x}")
    a("s_cmp_ge_u32 s3, 4\ns_cbranch_scc1 L_service")

    a.c("==== streaming waves 0..3: K/V ring, online softmax ====")
    NT = p.nt
    VOK, VOV, VMASK, VM, VL, VO, VS, VT, VQ, VA, RING = 4, 5, 6, 10, 11, 12, 16, 20, 32, 48, 64
    if p.vlay == "c":
        a(f"v_and_b32 v{VT}, 3, v2\nv_lshlrev_b32 v{VT}, 2, v{VT}\nv_lshrrev_b32 v{VT+1}, 2, v2\nv_add_u32 v{VT}, v{VT}, v{VT+1}")
        a(f"v_lshlrev_b32 v{VOK}, 8, v{VT}\nv_lshl_add_u32 v{VOK}, v3, 4, v{VOK}\nv_lshlrev_b32 v{VOV}, 4, v1")
        vstep = 1024
    else:
        a(f"v_lshlrev_b32 v{VOK}, 8, v2\nv_lshl_add_u32 v{VOK}, v3, 4, v{VOK}")
        a(f"v_lshlrev_b32 v{VOV}, 4, v2\nv_lshl_add_u32 v{VOV}, v3, 10, v{VOV}")
        vstep = 256
    a(f"s_lshl_b32 s16, s{S_H}, 23\ns_lshl_b32 s17, s{S_J}, 20\ns_add_u32 s16, s16, s17\ns_lshl_b32 s17, s3, 12\ns_add_u32 s16, s16, s17")
    a("s_waitcnt lgkmcnt(0)")
    srd(a, 8, S_K, 1 << 28)
    srd(a, 12, S_V, 1 << 28)

    def issue_k(s):
        for j in range(4):
            r = RING + 32 * s + 4 * j
            a(f"buffer_load_dwordx4 v[{r}:{r+3}], v{VOK}, s[8:11], s16 offen offset:{64*j} {p.pol_kv}")

    def issue_v(s):
        for j in range(4):
            r = RING + 32 * s + 16 + 4 * j
            a(f"buffer_load_dwordx4 v[{r}:{r+3}], v{VOV}, s[12:15], s16 offen offset:{vstep*j} {p.pol_kv}")
        a("s_add_u32 s16, s16, 0x4000")

    for s in range(p.pre):
        issue_k(s); issue_v(s)
    a("s_barrier")
    for s in range(p.pre, NT):
        issue_k(s); issue_v(s)
    masks(a, VMASK, 2, VT)
    a(f"v_mov_b32 v{VM}, {NFLTMAX:#x}\nv_mov_b32 v{VL}, 0")
    for r in range(4):
        a(f"v_mov_b32 v{VO+r}, 0")
    a(f"v_lshlrev_b32 v{VT+8}, 3, v1\ns_lshl_b32 s17, s3, 8\ns_add_u32 s17, s17, {L_QB}")
    a(f"v_lshl_add_u32 v{VT+9}, v1, 2, s17\nv_lshl_add_u32 v{VT+10}, v3, 4, s17")
    a("s_barrier")
    a.c("q = sum of the four service-wave partials, rounded to bf16, re-read in B-operand layout")
    for w in range(4):
        a(f"ds_read_b64 v[{VT+2*w}:{VT+2*w+1}], v{VT+8} offset:{L_QP + 512*w}")
    a("s_waitcnt lgkmcnt(0)")
    a(f"v_add_f32 v{VT}, v{VT}, v{VT+2}\nv_add_f32 v{VT+1}, v{VT+1}, v{VT+3}\nv_add_f32 v{VT+4}, v{VT+4}, v{VT+6}\nv_add_f32 v{VT+5}, v{VT+5}, v{VT+7}")
    a(f"v_add_f32 v{VT}, v{VT}, v{VT+4}\nv_add_f32 v{VT+1}, v{VT+1}, v{VT+5}\nv_cvt_pk_bf16_f32 v{VT}, v{VT}, v{VT+1}")
    a(f"ds_write_b32 v{VT+9}, v{VT}\ns_waitcnt lgkmcnt(0)")
    for j in range(4):
        a(f"ds_read_b128 v[{VQ+4*j}:{VQ+4*j+3}], v{VT+10} offset:{64*j}")
    a("s_waitcnt lgkmcnt(0)")
    stamp(a, p, 1)

    def tile(s, nk, nv, reissue):
        kb = RING + 32 * s
        vb = kb + 16
        T = VT
        a(f"s_waitcnt vmcnt({nk})")
        for j in range(4):
            c = "0" if j == 0 else f"v[{VS}:{VS+3}]"
            a(f"v_mfma_f32_16x16x32_bf16 v[{VS}:{VS+3}], v[{kb+4*j}:{kb+4*j+3}], v[{VQ+4*j}:{VQ+4*j+3}], {c}")
        if reissue:
            issue_k(s)
        a(f"v_cvt_pk_bf16_f32 v{T}, v{VS}, v{VS+1}\nv_cvt_pk_bf16_f32 v{T+1}, v{VS+2}, v{VS+3}")
        a(f"v_lshlrev_b32 v{VS}, 16, v{T}\nv_and_b32 v{VS+1}, 0xffff0000, v{T}\nv_lshlrev_b32 v{VS+2}, 16, v{T+1}\nv_and_b32 v{VS+3}, 0xffff0000, v{T+1}")
        for r in range(4):
            a(f"v_mul_f32 v{VS+r}, s{S_SCALE}, v{VS+r}")
        a(f"v_cvt_pk_bf16_f32 v{T}, v{VS}, v{VS+1}\nv_cvt_pk_bf16_f32 v{T+1}, v{VS+2}, v{VS+3}")
        a(f"v_lshlrev_b32 v{VS}, 16, v{T}\nv_and_b32 v{VS+1}, 0xffff0000, v{T}\nv_lshlrev_b32 v{VS+2}, 16, v{T+1}\nv_and_b32 v{VS+3}, 0xffff0000, v{T+1}")
        a(f"v_max3_f32 v{T}, v{VS}, v{VS+1}, v{VS+2}\nv_max3_f32 v{T}, v{T}, v{VS+3}, v{VM}")
        rows(a, "v_max_f32", T, T + 1)
        a(f"v_sub_f32 v{T+1}, v{VM}, v{T}\nv_mul_f32 v{T+2}, s{S_NLOG2E}, v{T}\nv_mul_f32 v{T+1}, s{S_LOG2E}, v{T+1}\nv_mov_b32 v{VM}, v{T}")
        for r in range(4):
            a(f"v_fma_f32 v{VS+r}, v{VS+r}, s{S_LOG2E}, v{T+2}")
        a(f"v_exp_f32 v{T+1}, v{T+1}")
        for r in range(4):
            a(f"v_exp_f32 v{VS+r}, v{VS+r}")
        for r in range(4):
            a(f"v_mul_f32 v{VO+r}, v{T+1}, v{VO+r}")
        a(f"v_fma_f32 v{VL}, v{VL}, v{T+1}, v{VS}\nv_add_f32 v{T+2}, v{VS+1}, v{VS+2}")
        for r in range(4):
            a(f"v_cvt_pk_bf16_f32 v{T+4+r}, v{VS+r}, v{VS+r}")
        a(f"v_add_f32 v{VL}, v{VL}, v{VS+3}")
        for r in range(4):
            for q in range(4):
                a(f"v_and_b32 v{VA+4*r+q}, v{T+4+r}, v{VMASK+q}")
        a(f"v_add_f32 v{VL}, v{VL}, v{T+2}")
        a(f"s_waitcnt vmcnt({nv})")
        for r in range(4):
            a(f"v_mfma_f32_16x16x32_bf16 v[{VO}:{VO+3}], v[{VA+4*r}:{VA+4*r+3}], v[{vb+4*r}:{vb+4*r+3}], v[{VO}:{VO+3}]")
        if reissue:
            issue_v(s)

    steady = 8 * NT - 4
    iters, rem = divmod(64 - NT, NT)
    a(f"s_mov_b32 s23, {iters}\n.p2align 6\nL_loop:")
    for s in range(NT):
        tile(s, steady, steady, True)
    a("s_sub_u32 s23, s23, 1\ns_cmp_lg_u32 s23, 0\ns_cbranch_scc1 L_loop")
    for s in range(rem):
        tile(s, steady, steady, True)
    for k in range(NT):
        tile((rem + k) % NT, 4 + 8 * (NT - 1 - k), 8 * (NT - 1 - k), False)
    stamp(a, p, 2)
    a.c("wave partial -> LDS")
    rows(a, "v_add_f32", VL, VT)
    a(f"s_mul_i32 s17, s3, {PART_STRIDE}\ns_add_u32 s17, s17, {L_PART}")
    a(f"v_lshlrev_b32 v{VT+1}, 5, v2\nv_lshl_add_u32 v{VT+1}, v3, 4, v{VT+1}\nv_add_u32 v{VT+1}, s17, v{VT+1}\nv_mov_b32 v{VT+2}, s17")
    a("s_mov_b32 exec_hi, 0")
    a(f"ds_write_b128 v{VT+1}, v[{VO}:{VO+3}]\nds_write_b64 v{VT+2}, v[{VM}:{VL}] offset:512")
    a("s_waitcnt lgkmcnt(0)\ns_barrier")
    if p.stamps:
        a("s_cmp_lg_u32 s3, 0\ns_cbranch_scc1 L_end")
        srd(a, 8, S_WS, 1 << 30)
        a("s_getreg_b32 s70, hwreg(HW_REG_XCC_ID)\ns_lshl_b32 s17, s2, 6\n" + f"s_add_u32 s17, s17, {WS_STAMP:#x}\nv_mov_b32 v20, s17")
        a("v_mov_b32 v24, s64\nv_mov_b32 v25, s66\nv_mov_b32 v26, s68\nv_mov_b32 v27, s70")
        a("buffer_store_dwordx4 v[24:27], v20, s[8:11], 0 offen")
    a("s_endpgm")

    a.c("==== service waves 4..7: LayerNorm and the q projection ====")
    a("L_service:")
    XD, XU, VW, SM, MB, RS, QA, A0, T, BUF = 4, 9, 12, 14, 18, 19, 20, 24, 32, 64
    a("s_sub_u32 s17, s3, 4")
    a(f"v_lshlrev_b32 v{T}, 2, v1\nv_lshlrev_b32 v{T+1}, 3, v2\nv_lshl_add_u32 v{T+1}, v3, 1, v{T+1}")
    a(f"v_lshlrev_b32 v{VW}, 13, v3\nv_lshl_add_u32 v{VW}, v2, 4, v{VW}")
    a(f"s_mul_i32 s18, s17, 288\ns_mul_i32 s19, s17, {144*8192}\ns_lshl_b32 s16, s{S_H}, 8\ns_add_u32 s16, s16, s19")
    a("s_waitcnt lgkmcnt(0)")
    srd(a, 8, S_X, 1152)
    srd(a, 12, S_WQ, 576 * 8192)
    for k in range(5):
        a(f"buffer_load_dword v{XD+k}, v{T}, s[8:11], 0 offen offset:{256*k}")
    for k in range(3):
        a(f"buffer_load_ushort v{XU+k}, v{T+1}, s[8:11], s18 offen offset:{128*k}")
    for i in range(36):
        r = BUF + 4 * i
        a(f"buffer_load_dwordx4 v[{r}:{r+3}], v{VW}, s[12:15], s16 offen {p.pol_wq}")
        if i < 35:
            a("s_add_u32 s16, s16, 0x8000")
    a("s_barrier")
    masks(a, SM, 2, T + 2)
    a("s_waitcnt vmcnt(39)")
    X = T + 4
    for k in range(5):
        a(f"v_lshlrev_b32 v{X+2*k}, 16, v{XD+k}\nv_and_b32 v{X+2*k+1}, 0xffff0000, v{XD+k}")
    S = T + 14
    a(f"v_add_f32 v{S}, v{X}, v{X+1}")
    for k in range(2, 10):
        a(f"v_add_f32 v{S}, v{S}, v{X+k}")
    allreduce(a, "v_add_f32", S, S + 1)
    a(f"v_mul_f32 v{S}, {INV576:#x}, v{S}")
    for k in range(10):
        a(f"v_sub_f32 v{X+k}, v{X+k}, v{S}")
    a(f"v_cmp_gt_u32 vcc, 32, v1\nv_cndmask_b32 v{X+8}, 0, v{X+8}, vcc\nv_cndmask_b32 v{X+9}, 0, v{X+9}, vcc")
    a(f"v_mul_f32 v{S+2}, v{X}, v{X}")
    for k in range(1, 10):
        a(f"v_fmac_f32 v{S+2}, v{X+k}, v{X+k}")
    allreduce(a, "v_add_f32", S + 2, S + 1)
    a(f"v_mul_f32 v{RS}, {INV576:#x}, v{S+2}\nv_mov_b32 v{MB}, v{S}")
    bf16r(a, MB)
    bf16r(a, RS)
    a(f"v_add_f32 v{RS}, {EPS:#x}, v{RS}")
    bf16r(a, RS)
    a(f"v_sqrt_f32 v{RS}, v{RS}")
    bf16r(a, RS)
    a(f"v_rcp_f32 v{RS}, v{RS}")

    def ln(v):
        a(f"v_lshlrev_b32 v{v}, 16, v{v}\nv_sub_f32 v{v}, v{v}, v{MB}")
        bf16r(a, v)
        a(f"v_mul_f32 v{v}, v{v}, v{RS}\nv_cvt_pk_bf16_f32 v{v}, v{v}, v{v}")

    a("s_waitcnt vmcnt(36)")
    for k in range(3):
        ln(XU + k)

    def build_a(dst, src, lane, n):
        for q in range(n):
            a(f"v_and_b32_dpp v{dst+q}, v{src}, v{SM+q} row_newbcast:{lane} row_mask:0xf bank_mask:0xf")

    build_a(A0, XU, 0, 4)
    for i in range(36):
        if i < 35:
            build_a(A0 + 4 * ((i + 1) & 1), XU + (i + 1) // 16, (i + 1) % 16, 4)
        a(f"s_waitcnt vmcnt({35-i})")
        c = "0" if i == 0 else f"v[{QA}:{QA+3}]"
        ar = A0 + 4 * (i & 1)
        a(f"v_mfma_f32_16x16x32_bf16 v[{QA}:{QA+3}], v[{ar}:{ar+3}], v[{BUF+4*i}:{BUF+4*i+3}], {c}")
    a(f"s_lshl_b32 s18, s17, 9\nv_lshlrev_b32 v{T}, 5, v2\nv_lshl_add_u32 v{T}, v3, 4, v{T}\nv_add_u32 v{T}, s18, v{T}")
    a("s_mov_b32 exec_hi, 0")
    a(f"ds_write_b128 v{T}, v[{QA}:{QA+3}] offset:{L_QP}")
    a("s_mov_b32 exec_hi, -1\ns_waitcnt lgkmcnt(0)\ns_barrier")
    a("s_cmp_eq_u32 s3, 5\ns_cbranch_scc1 L_attn\ns_cmp_eq_u32 s3, 6\ns_cbranch_scc1 L_final\ns_cmp_eq_u32 s3, 7\ns_cbranch_scc1 L_end")

    a.c("==== wave 4: FFN up-projection block, GELU, start-up publication, FFN down-projection slice ====")
    XF, HA, VB1 = 32, 20, 44
    a(f"v_lshlrev_b32 v4, 3, v2\nv_lshl_add_u32 v4, v3, 1, v4")
    for k in range(9):
        a(f"buffer_load_ushort v{XF+k}, v4, s[8:11], 0 offen offset:{128*k}")
    srd(a, 12, S_W1, 576 * 9216)
    a(f"v_mul_u32_u24 v5, 9216, v3\nv_lshl_add_u32 v5, v2, 3, v5\nv_mov_b32 v6, {OOB:#x}\nv_cmp_gt_u32 vcc, 5, v2\nv_cndmask_b32 v5, v6, v5, vcc")
    a(f"s_mul_i32 s16, s{S_BP}, 36\ns_mov_b32 s19, s16")
    NB1 = 48

    def issue_w1(i):
        r = BUF + 2 * (i % NB1)
        a(f"buffer_load_dwordx2 v[{r}:{r+1}], v5, s[12:15], s16 offen {p.pol_w}")
        if i < 143:
            a(f"s_add_u32 s16, s16, {4*9216}")

    for i in range(NB1):
        issue_w1(i)
    a(f"s_waitcnt vmcnt({NB1})")
    for k in range(9):
        ln(XF + k)
    build_a(A0, XF, 0, 2)
    for i in range(144):
        if i < 143:
            build_a(A0 + 2 * ((i + 1) & 1), XF + (i + 1) // 16, (i + 1) % 16, 2)
        a(f"s_waitcnt vmcnt({min(NB1-1, 143-i)})")
        c = "0" if i == 0 else f"v[{HA}:{HA+3}]"
        ar = A0 + 2 * (i & 1)
        r = BUF + 2 * (i % NB1)
        a(f"v_mfma_f32_16x16x16_bf16 v[{HA}:{HA+3}], v[{ar}:{ar+1}], v[{r}:{r+1}], {c}")
        if i + NB1 < 144:
            issue_w1(i + NB1)
    srd(a, 12, S_B1, 9216)
    a(f"v_lshlrev_b32 v5, 3, v2\nbuffer_load_dwordx2 v[{VB1}:{VB1+1}], v5, s[12:15], s19 offen")
    srd(a, 8, S_WS, WS_SIZE)
    a.c("clear the hand-off slots this workgroup owns")
    a(f"v_mov_b32 v24, -1\nv_mov_b32 v25, -1\nv_mov_b32 v26, -1\nv_mov_b32 v27, -1")
    a(f"s_lshl_b32 s16, s{S_H}, 11\ns_lshl_b32 s18, s{S_J}, 8\ns_add_u32 s16, s16, s18\ns_add_u32 s16, s16, {WS_P}")
    a("v_lshlrev_b32 v6, 2, v1\nbuffer_store_dword v24, v6, s[8:11], s16 offen sc1")
    a(f"s_lshl_b32 s16, s{S_H}, 7\ns_lshl_b32 s18, s{S_J}, 2\ns_add_u32 s16, s16, s18\ns_add_u32 s16, s16, {WS_ML}")
    a(f"v_lshlrev_b32 v6, 6, v1\nv_mov_b32 v7, {OOB:#x}\nv_cmp_gt_u32 vcc, 2, v1\nv_cndmask_b32 v6, v7, v6, vcc")
    a("buffer_store_dword v24, v6, s[8:11], s16 offen sc1")
    a("s_cmp_ge_u32 s2, 72\ns_cbranch_scc1 L_noclr")
    a(f"s_lshl_b32 s16, s2, 11\ns_add_u32 s16, s16, {WS_Y}\nv_lshlrev_b32 v6, 4, v1")
    a("buffer_store_dwordx4 v[24:27], v6, s[8:11], s16 offen sc1\nbuffer_store_dwordx4 v[24:27], v6, s[8:11], s16 offen offset:1024 sc1")
    a("L_noclr:")
    a("s_waitcnt vmcnt(0)")
    a.c("h = bf16(bf16(acc) + b1); g = h / (1 + exp(-2u)), u = beta * (h + kappa h^3)")
    a(f"v_lshlrev_b32 v28, 16, v{VB1}\nv_and_b32 v29, 0xffff0000, v{VB1}\nv_lshlrev_b32 v30, 16, v{VB1+1}\nv_and_b32 v31, 0xffff0000, v{VB1+1}")
    a("s_mov_b32 s16, 0x3d372713\ns_mov_b32 s18, 0xc0135761")
    for r in range(4):
        h = HA + r
        bf16r(a, h)
        a(f"v_add_f32 v{h}, v{h}, v{28+r}")
        bf16r(a, h)
        a(f"v_mul_f32 v{28+r}, v{h}, v{h}\nv_mul_f32 v{28+r}, v{28+r}, v{h}\nv_fma_f32 v{28+r}, v{28+r}, s16, v{h}")
        a(f"v_mul_f32 v{28+r}, s18, v{28+r}\nv_exp_f32 v{28+r}, v{28+r}\nv_add_f32 v{28+r}, 1.0, v{28+r}\nv_rcp_f32 v{28+r}, v{28+r}")
        a(f"v_mul_f32 v{h}, v{h}, v{28+r}")
    a(f"v_cvt_pk_bf16_f32 v28, v{HA}, v{HA+1}\nv_cvt_pk_bf16_f32 v29, v{HA+2}, v{HA+3}")
    a(f"v_lshlrev_b32 v6, 3, v1\nv_mov_b32 v7, {OOB:#x}\nv_cmp_gt_u32 vcc, 5, v1\nv_cndmask_b32 v5, v7, v6, vcc\nv_cmp_gt_u32 vcc, 4, v1\nv_cndmask_b32 v6, v7, v6, vcc")
    a(f"s_add_u32 s19, s19, {WS_G}")
    a("buffer_store_dword v28, v5, s[8:11], s19 offen sc1\nbuffer_store_dword v29, v6, s[8:11], s19 offen offset:4 sc1")
    a("s_waitcnt vmcnt(0)")
    a(f"s_mov_b32 s16, 1\ns_atomic_add s16, s[{S_DBG}:{S_DBG+1}], 0 glc\ns_waitcnt lgkmcnt(0)")
    srd(a, 12, S_W2, 4608 * 1152)
    a(f"s_mul_i32 s16, s{S_H}, {144*1152}\ns_mul_i32 s18, s{S_J}, 144\ns_add_u32 s33, s16, s18")
    dma_slice(a, 12, 33, 21, L_W2, 1, 4, p.pol_w)
    YA = 6
    y_addr(a, YA, 2, 3, 4)
    poll_init(a, "L_pi4", 4, 12)
    a(f"s_mul_i32 s16, s{S_H}, 288\ns_add_u32 s16, s16, {WS_G}\nv_lshlrev_b32 v4, 4, v3\nv_lshlrev_b32 v5, 3, v3")
    GA = 32
    for k in range(4):
        a(f"buffer_load_dwordx4 v[{GA+4*k}:{GA+4*k+3}], v4, s[8:11], s16 offen offset:{64*k} sc1")
    a(f"buffer_load_dwordx2 v[{GA+16}:{GA+17}], v5, s[8:11], s16 offen offset:256 sc1")

    def tr_addr(vd, mul, base):
        a(f"v_lshrrev_b32 v{vd}, 2, v2\nv_lshl_add_u32 v{vd}, v3, {mul}, v{vd}\nv_mul_u32_u24 v{vd}, 144, v{vd}")
        a(f"v_and_b32 v{vd+1}, 3, v2\nv_lshl_add_u32 v{vd}, v{vd+1}, 3, v{vd}\nv_add_u32 v{vd}, {base}, v{vd}")

    tr_addr(8, 3, L_W2)
    tr_addr(10, 2, L_W2 + 128 * 144)
    for t in range(5):
        for k in range(4):
            r = BUF + 18 * t + 4 * k
            a(f"ds_read_b64_tr_b16 v[{r}:{r+1}], v8 offset:{32*k*144 + 32*t}\nds_read_b64_tr_b16 v[{r+2}:{r+3}], v8 offset:{(32*k+4)*144 + 32*t}")
        r = BUF + 18 * t + 16
        a(f"ds_read_b64_tr_b16 v[{r}:{r+1}], v10 offset:{32*t}")
        a("s_waitcnt lgkmcnt(0)")
    a("s_waitcnt vmcnt(0)")
    DF = 160
    for k in range(4):
        for t in range(5):
            c = "0" if k == 0 else f"v[{DF+4*t}:{DF+4*t+3}]"
            r = BUF + 18 * t + 4 * k
            a(f"v_mfma_f32_16x16x32_bf16 v[{DF+4*t}:{DF+4*t+3}], v[{GA+4*k}:{GA+4*k+3}], v[{r}:{r+3}], {c}")
    for t in range(5):
        r = BUF + 18 * t + 16
        a(f"v_mfma_f32_16x16x16_bf16 v[{DF+4*t}:{DF+4*t+3}], v[{GA+16}:{GA+17}], v[{r}:{r+1}], v[{DF+4*t}:{DF+4*t+3}]")
    for t in range(1, 4):
        a(f"v_cmp_eq_u32 vcc, {t}, v3\nv_cndmask_b32 v{DF}, v{DF}, v{DF+4*t}, vcc")
    a(f"v_min_u32 v{DF}, -2, v{DF}\nv_min_u32 v{DF+16}, -2, v{DF+16}")
    a(f"buffer_store_dword v{DF}, v{YA}, s[8:11], 0 offen offset:1024 sc1\nbuffer_store_dword v{DF+16}, v{YA+1}, s[8:11], 0 offen offset:1024 sc1")
    a("s_endpgm")

    a.c("==== wave 5: workgroup merge, head-group merge, output projection slice ====")
    a("L_attn:")
    srd(a, 12, S_WO, 4096 * 1152)
    a(f"s_mul_i32 s16, s{S_H}, {128*1152}\ns_mul_i32 s18, s{S_J}, 144\ns_add_u32 s33, s16, s18")
    dma_slice(a, 12, 33, 18, L_WO, 1, 4, p.pol_w)
    srd(a, 8, S_WS, WS_SIZE)
    y_addr(a, YA, 2, 3, 4)
    poll_init(a, "L_pi5", 4, 12)
    tr_addr(8, 3, L_WO)
    for t in range(5):
        for k in range(4):
            r = BUF + 16 * t + 4 * k
            a(f"ds_read_b64_tr_b16 v[{r}:{r+1}], v8 offset:{32*k*144 + 32*t}\nds_read_b64_tr_b16 v[{r+2}:{r+3}], v8 offset:{(32*k+4)*144 + 32*t}")
        a("s_waitcnt lgkmcnt(0)")
    a(f"s_lshl_b32 s16, s{S_H}, 11\ns_add_u32 s16, s16, {WS_P}\ns_lshl_b32 s18, s{S_J}, 8\ns_add_u32 s17, s16, s18")
    a(f"s_lshl_b32 s18, s{S_H}, 7\ns_add_u32 s18, s18, {WS_ML}\ns_lshl_b32 s19, s{S_J}, 2\ns_add_u32 s19, s19, s18")
    a(f"v_lshlrev_b32 v8, 3, v1\nv_lshlrev_b32 v9, 2, v1\nv_mov_b32 v10, 0")
    a(f"v_lshlrev_b32 v11, 6, v1\nv_mov_b32 v12, {OOB:#x}\nv_cmp_gt_u32 vcc, 2, v1\nv_cndmask_b32 v11, v12, v11, vcc")
    a("v_and_b32 v12, 7, v2\nv_lshlrev_b32 v12, 8, v12\nv_lshl_add_u32 v12, v3, 4, v12\nv_and_b32 v13, 1, v3\nv_lshlrev_b32 v13, 4, v13")
    a("v_cmp_eq_u32 s[34:35], 0, v1")
    a(f"s_mov_b32 s30, {SPIN_LIMIT}")
    a("s_barrier")
    stamp(a, p, 1)
    O, ML = 16, 24
    for w in range(4):
        a(f"ds_read_b64 v[{ML+2*w}:{ML+2*w+1}], v10 offset:{L_PART + PART_STRIDE*w + 512}")
    for w in range(4):
        a(f"ds_read_b64 v[{O+2*w}:{O+2*w+1}], v8 offset:{L_PART + PART_STRIDE*w}")
    a("s_waitcnt lgkmcnt(0)" if p.stamps else "s_waitcnt lgkmcnt(4)")
    a(f"v_max3_f32 v32, v{ML}, v{ML+2}, v{ML+4}\nv_max_f32 v32, v32, v{ML+6}")
    for w in range(4):
        a(f"v_sub_f32 v{ML+2*w}, v{ML+2*w}, v32")
    for w in range(4):
        a(f"v_mul_f32 v{ML+2*w}, s{S_LOG2E}, v{ML+2*w}")
    for w in range(4):
        a(f"v_exp_f32 v{ML+2*w}, v{ML+2*w}")
    a(f"v_mul_f32 v33, v{ML}, v{ML+1}")
    for w in range(1, 4):
        a(f"v_fmac_f32 v33, v{ML+2*w}, v{ML+2*w+1}")
    a("s_waitcnt lgkmcnt(0)")
    a(f"v_rcp_f32 v34, v33\nv_mul_f32 v{O}, v{ML}, v{O}\nv_mul_f32 v{O+1}, v{ML}, v{O+1}")
    for w in range(1, 4):
        a(f"v_fmac_f32 v{O}, v{ML+2*w}, v{O+2*w}\nv_fmac_f32 v{O+1}, v{ML+2*w}, v{O+2*w+1}")
    a(f"v_cndmask_b32 v33, v33, v32, s[34:35]\nv_mul_f32 v{O}, v34, v{O}\nv_mul_f32 v{O+1}, v34, v{O+1}")
    a(f"v_min_u32 v33, -2, v33\nv_cvt_pk_bf16_f32 v{O}, v{O}, v{O+1}\nv_min_u32 v{O}, -2, v{O}")
    a(f"buffer_store_dword v33, v11, s[8:11], s19 offen sc1\nbuffer_store_dword v{O}, v9, s[8:11], s17 offen sc1")
    AP, M4, L4 = 16, 32, 36
    a("L_h1:")
    for k in range(4):
        a(f"buffer_load_dwordx4 v[{AP+4*k}:{AP+4*k+3}], v12, s[8:11], s16 offen offset:{64*k} sc1")
    a(f"buffer_load_dwordx4 v[{M4}:{M4+3}], v13, s[8:11], s18 offen sc1\nbuffer_load_dwordx4 v[{L4}:{L4+3}], v13, s[8:11], s18 offen offset:64 sc1")
    a("s_waitcnt vmcnt(0)")
    a(f"v_max3_u32 v40, v{AP}, v{AP+1}, v{AP+2}\nv_max3_u32 v41, v{AP+12}, v{AP+13}, v{AP+14}")
    for i in range(4):
        a(f"v_max3_u32 v40, v40, v{AP+3+2*i}, v{AP+4+2*i}\nv_max3_u32 v41, v41, v{AP+15+2*i}, v{AP+16+2*i}")
    a(f"v_max3_u32 v40, v40, v{AP+11}, v{AP+23}\nv_max_u32 v40, v40, v41\nv_cmp_eq_u32 vcc, -1, v40")
    spin_tail(a, "L_h1", 30, 1)
    stamp(a, p, 2)
    DA = 160
    for k in range(4):
        for t in range(5):
            c = "0" if k == 0 else f"v[{DA+4*t}:{DA+4*t+3}]"
            r = BUF + 16 * t + 4 * k
            a(f"v_mfma_f32_16x16x32_bf16 v[{DA+4*t}:{DA+4*t+3}], v[{AP+4*k}:{AP+4*k+3}], v[{r}:{r+3}], {c}")
            if k == 0 and t == 0:
                a(f"v_max3_f32 v40, v{M4}, v{M4+1}, v{M4+2}\nv_max_f32 v40, v40, v{M4+3}")
            if k == 0 and t == 2:
                rows(a, "v_max_f32", 40, 41, both=False)
            if k == 1 and t == 0:
                for r2 in range(4):
                    a(f"v_sub_f32 v{M4+r2}, v{M4+r2}, v40")
            if k == 1 and t == 2:
                for r2 in range(4):
                    a(f"v_mul_f32 v{M4+r2}, s{S_LOG2E}, v{M4+r2}")
            if k == 1 and t == 4:
                for r2 in range(4):
                    a(f"v_exp_f32 v{M4+r2}, v{M4+r2}")
            if k == 2 and t == 1:
                for r2 in range(4):
                    a(f"v_mul_f32 v{M4+r2}, v{M4+r2}, v{L4+r2}")
            if k == 2 and t == 3:
                a(f"v_add_f32 v40, v{M4}, v{M4+1}\nv_add_f32 v41, v{M4+2}, v{M4+3}\nv_add_f32 v40, v40, v41")
            if k == 3 and t == 0:
                rows(a, "v_add_f32", 40, 41, both=False)
            if k == 3 and t == 2:
                a("v_rcp_f32 v40, v40")
            if k == 3 and t == 3:
                for r2 in range(4):
                    a(f"v_mul_f32 v{M4+r2}, v{M4+r2}, v40")
    for t in range(5):
        a(f"v_mul_f32 v{42+t}, v{M4}, v{DA+4*t}")
        for r2 in range(1, 4):
            a(f"v_fmac_f32 v{42+t}, v{M4+r2}, v{DA+4*t+r2}")
    a("v_cmp_gt_u32 vcc, 32, v1\nv_mov_b32 v47, v46\nv_cndmask_b32 v42, v44, v42, vcc\nv_cndmask_b32 v43, v45, v43, vcc")
    a("v_permlane16_swap_b32 v47, v46\nv_permlane16_swap_b32 v42, v43\nv_add_f32 v46, v46, v47\nv_add_f32 v42, v42, v43")
    a("v_min_u32 v46, -2, v46\nv_min_u32 v42, -2, v42")
    a(f"buffer_store_dword v42, v{YA}, s[8:11], 0 offen sc1\nbuffer_store_dword v46, v{YA+1}, s[8:11], 0 offen sc1")
    if p.stamps:
        a("s_memrealtime s[70:71]\ns_waitcnt lgkmcnt(0)")
        srd(a, 8, S_WS, 1 << 30)
        a("s_lshl_b32 s17, s2, 6\n" + f"s_add_u32 s17, s17, {WS_STAMP+16:#x}\nv_mov_b32 v20, s17")
        a("v_mov_b32 v24, s64\nv_mov_b32 v25, s66\nv_mov_b32 v26, s68\nv_mov_b32 v27, s70")
        a("buffer_store_dwordx4 v[24:27], v20, s[8:11], 0 offen")
    a("s_endpgm")

    a.c("==== wave 6 of workgroups 0..71: final reduction of eight output columns ====")
    a("L_final:")
    a("s_cmp_ge_u32 s2, 72\ns_cbranch_scc1 L_end")
    a("s_lshl_b32 s16, s2, 4\nv_and_b32 v4, 1, v1\nv_lshlrev_b32 v4, 3, v4")
    a("buffer_load_dwordx2 v[8:9], v4, s[8:11], s16 offen")
    srd(a, 12, S_B2, 1152)
    a("buffer_load_dwordx2 v[10:11], v4, s[12:15], s16 offen")
    poll_init(a, "L_pi6", 5, 12)
    srd(a, 8, S_WS, WS_SIZE)
    srd(a, 12, S_OUT, 1152)
    a("v_lshlrev_b32 v12, 16, v8\nv_and_b32 v13, 0xffff0000, v8\nv_lshlrev_b32 v14, 16, v9\nv_and_b32 v15, 0xffff0000, v9")
    a("v_lshlrev_b32 v16, 16, v10\nv_and_b32 v17, 0xffff0000, v10\nv_lshlrev_b32 v18, 16, v11\nv_and_b32 v19, 0xffff0000, v11")
    a(f"s_lshl_b32 s17, s2, 11\ns_add_u32 s17, s17, {WS_Y}\nv_lshlrev_b32 v5, 4, v1")
    a(f"v_mov_b32 v6, {OOB:#x}\nv_cmp_gt_u32 vcc, 2, v1\nv_cndmask_b32 v4, v6, v4, vcc")
    a(f"s_mov_b32 s30, {SPIN_LIMIT}")
    a("s_barrier")
    a("L_h2:")
    a("buffer_load_dwordx4 v[20:23], v5, s[8:11], s17 offen sc1\nbuffer_load_dwordx4 v[24:27], v5, s[8:11], s17 offen offset:1024 sc1")
    a("s_waitcnt vmcnt(0)")
    a("v_max3_u32 v28, v20, v21, v22\nv_max3_u32 v29, v24, v25, v26\nv_max3_u32 v28, v28, v23, v27\nv_max_u32 v28, v28, v29\nv_cmp_eq_u32 vcc, -1, v28")
    spin_tail(a, "L_h2", 30, 1)
    stamp(a, p, 1)
    for r in (8, 4, 2):
        for i in range(8):
            a(f"v_add_f32_dpp v{20+i}, v{20+i}, v{20+i} row_ror:{r} row_mask:0xf bank_mask:0xf")
    for sw in ("v_permlane16_swap_b32", "v_permlane32_swap_b32"):
        for i in range(8):
            a(f"v_mov_b32 v{32+i}, v{20+i}")
        for i in range(8):
            a(f"{sw} v{32+i}, v{20+i}")
        for i in range(8):
            a(f"v_add_f32 v{20+i}, v{20+i}, v{32+i}")

    def round4(b):
        a(f"v_cvt_pk_bf16_f32 v28, v{b}, v{b+1}\nv_cvt_pk_bf16_f32 v29, v{b+2}, v{b+3}")
        a(f"v_lshlrev_b32 v{b}, 16, v28\nv_and_b32 v{b+1}, 0xffff0000, v28\nv_lshlrev_b32 v{b+2}, 16, v29\nv_and_b32 v{b+3}, 0xffff0000, v29")

    round4(20); round4(24)
    for i in range(4):
        a(f"v_add_f32 v{20+i}, v{12+i}, v{20+i}\nv_add_f32 v{24+i}, v{24+i}, v{16+i}")
    round4(20); round4(24)
    for i in range(4):
        a(f"v_add_f32 v{20+i}, v{20+i}, v{24+i}")
    a("v_cvt_pk_bf16_f32 v28, v20, v21\nv_cvt_pk_bf16_f32 v29, v22, v23")
    a("buffer_store_dwordx2 v[28:29], v4, s[12:15], s16 offen sc1")
    if p.stamps:
        a("s_waitcnt vmcnt(0)\ns_memrealtime s[68:69]\ns_waitcnt lgkmcnt(0)")
        srd(a, 8, S_WS, 1 << 30)
        a("s_lshl_b32 s17, s2, 6\n" + f"s_add_u32 s17, s17, {WS_STAMP+32:#x}\nv_mov_b32 v20, s17")
        a("v_mov_b32 v24, s64\nv_mov_b32 v25, s66\nv_mov_b32 v26, s68\nv_mov_b32 v27, s68")
        a("buffer_store_dwordx4 v[24:27], v20, s[8:11], 0 offen")
    a("L_end:\ns_endpgm")
    nv = max(RING + 32 * NT, BUF + 144)
    nv = max((nv + 7) // 8 * 8, 136)
    body, nn = a.text()
    tail = f""".section .rodata,"a"
.p2align 6
.amdhsa_kernel {K}
  .amdhsa_next_free_vgpr {nv}
  .amdhsa_next_free_sgpr 96
  .amdhsa_accum_offset {nv}
  .amdhsa_group_segment_fixed_size 0
  .amdhsa_kernarg_size 104
  .amdhsa_user_sgpr_count 2
  .amdhsa_user_sgpr_kernarg_segment_ptr 1
  .amdhsa_system_sgpr_workgroup_id_x 1
  .amdhsa_float_denorm_mode_32 3
.end_amdhsa_kernel
"""
    head = HEADER + f"; @launch grid=(256,1,1) block=(512,1,1) lds={LDS_BYTES}\n"
    return head + body + tail


if __name__ == "__main__":
    out = sys.argv[1]
    p = P()
    for kv in sys.argv[2:]:
        k, v = kv.split("=")
        cur = getattr(p, k)
        setattr(p, k, int(v) if isinstance(cur, int) else v.replace("+", " ").replace("-", ""))
    open(out, "w").write(gen(p))
```
